```python
import torch

def _softmax(x, axis=-1):
    return torch.softmax(x, dim=axis)
def _gelu(x):
    return torch.nn.functional.gelu(x, approximate="tanh")
def _silu(x):
    return torch.nn.functional.silu(x)
def _sigmoid(x):
    return torch.sigmoid(x)
def _layernorm(x, axis=-1, eps=1e-5):
    m = x.mean(dim=axis, keepdim=True)
    v = x.var(dim=axis, keepdim=True, unbiased=False)
    return (x - m) / torch.sqrt(v + eps)
def _scatter_add(tgt, idx, src, axis=0):
    return tgt.clone().index_add_(axis, idx, src)
def _segment_sum(src, seg, n):
    out = torch.zeros((n,) + src.shape[1:], dtype=src.dtype)
    return out.index_add_(0, seg, src)
def _pad(x, pw):
    flat = tuple(v for pair in reversed(pw) for v in pair)
    return torch.nn.functional.pad(x, flat)

kernel_name = 'parallel_sum__gqa_block_cached__glu_gated_geglu__decode'

def setup_inputs():

    _w = (lambda a: (lambda t: t.to(torch.bfloat16) if t.is_floating_point() else t)(torch.as_tensor(a)))
    def _A_setup():
        B, Sq, D = 4, 1, 512
        Hq, Hkv, Sk, Dh = 32, 8, 4096, 128
        assert Hq % Hkv == 0, (Hq, Hkv)
        return {
            "x": _w((lambda *s: torch.randn(*s, dtype=torch.bfloat16) * 0.05)(B, Sq, D)),
            "k_cache": _w((lambda *s: torch.randn(*s, dtype=torch.bfloat16) * 1.6)(B, Hkv, Sk, Dh)),
            "v_cache": _w((lambda *s: torch.randn(*s, dtype=torch.bfloat16) * 0.8)(B, Hkv, Sk, Dh)),
            "wq": _w((lambda *s: torch.randn(*s, dtype=torch.bfloat16) * 1.6)(D, Hq * Dh) * (D ** -0.5)),
            "wo": _w((lambda *s: torch.randn(*s, dtype=torch.bfloat16) * 0.8)(Hq * Dh, D) * ((Hq * Dh) ** -0.5)),
        }
    _A_in = _A_setup()

    def _B_setup():
        B, S, Dm, Df = 4, 1, 512, 1792
        return {
            "x": _w((lambda *s: torch.randn(*s, dtype=torch.bfloat16) * 0.05)(B, S, Dm)),
            "w_gate": _w((lambda *s: torch.randn(*s, dtype=torch.bfloat16) * 0.4)(Dm, Df) * (Dm ** -0.5)),
            "w_up": _w((lambda *s: torch.randn(*s, dtype=torch.bfloat16) * 0.4)(Dm, Df) * (Dm ** -0.5)),
            "w_down": _w((lambda *s: torch.randn(*s, dtype=torch.bfloat16) * 0.4)(Df, Dm) * (Df ** -0.5)),
        }
    _B_in = _B_setup()

    return {
        "A_x": _A_in["x"],
        "A_k_cache": _A_in["k_cache"],
        "A_v_cache": _A_in["v_cache"],
        "A_wq": _A_in["wq"],
        "A_wo": _A_in["wo"],
        "B_x": _B_in["x"],
        "B_w_gate": _B_in["w_gate"],
        "B_w_up": _B_in["w_up"],
        "B_w_down": _B_in["w_down"],
    }

def reference(A_x, A_k_cache, A_v_cache, A_wq, A_wo, B_x, B_w_gate, B_w_up, B_w_down):
    def _A_ref(x, k_cache, v_cache, wq, wo):
        B, Sq, D = x.shape
        Hq, Dh = 32, 128
        Hkv = k_cache.shape[1]
        rep = Hq // Hkv
        q = (lambda x, *d: x.permute(*d))((x @ wq).reshape(B, Sq, Hq, Dh), 0, 2, 1, 3)
        k = (lambda x, n, axis: torch.repeat_interleave(x, n, dim=axis))(k_cache, rep, axis=1)
        v = (lambda x, n, axis: torch.repeat_interleave(x, n, dim=axis))(v_cache, rep, axis=1)
        scores = torch.einsum("bhqd,bhkd->bhqk", q, k) * (Dh ** -0.5)
        p = _softmax(scores, axis=-1)
        o = torch.einsum("bhqk,bhkd->bhqd", p, v)
        return (lambda x, *d: x.permute(*d))(o, 0, 2, 1, 3).reshape(B, Sq, Hq * Dh) @ wo

    def _B_ref(x, w_gate, w_up, w_down):
        g = torch.einsum("bsd,df->bsf", x, w_gate)
        u = torch.einsum("bsd,df->bsf", x, w_up)
        h = _gelu(g) * u
        return torch.einsum("bsf,fd->bsd", h, w_down)

    x = A_x
    xn = _layernorm(x, axis=-1)
    return x + _A_ref(xn, A_k_cache, A_v_cache, A_wq, A_wo) + _B_ref(xn, B_w_gate, B_w_up, B_w_down)
```

```python
import re

_REG = re.compile(r'^(-|abs\(|\|)?([vsa])(\d+)\)?\|?$')
_RNG = re.compile(r'^(-)?([vsa])\[(\d+):(\d+)\]$')
TRANS = ('v_exp_f32', 'v_log_f32', 'v_rcp_f32', 'v_rsq_f32', 'v_sqrt_f32', 'v_sin_f32', 'v_cos_f32', 'v_rcp_iflag_f32')

def regs_of(tok):
    tok = tok.strip()
    m = _REG.match(tok)
    if m: return {(m.group(2), int(m.group(3)))}
    m = _RNG.match(tok)
    if m: return {(m.group(2), i) for i in range(int(m.group(3)), int(m.group(4)) + 1)}
    if tok == 'vcc': return {('s', 'vcc')}
    if tok == 'exec': return {('s', 'exec')}
    if tok == 'm0': return {('s', 'm0')}
    if tok == 'scc': return {('s', 'scc')}
    return set()

class Ins:
    def __init__(self, text):
        self.text = text
        t = text.split(';')[0].strip()
        parts = t.split(None, 1)
        self.op = parts[0]
        rest = parts[1] if len(parts) > 1 else ''
        ops, depth, cur = [], 0, ''
        for ch in rest:
            if ch in '[(': depth += 1
            if ch in '])': depth -= 1
            if ch == ',' and depth == 0:
                ops.append(cur); cur = ''
            else: cur += ch
        if cur.strip(): ops.append(cur)
        self.mods = ''
        if ops:
            last = ops[-1].strip().split(None, 1)
            ops[-1] = last[0]
            if len(last) > 1: self.mods = last[1]
        self.ops = [o.strip() for o in ops]
        op = self.op
        self.valu = op.startswith('v_') and not op.startswith('v_mfma')
        self.mfma = op.startswith('v_mfma')
        self.trans = any(op.startswith(x) for x in TRANS)
        self.vmem = op.startswith(('buffer_', 'global_', 'flat_'))
        self.ds = op.startswith('ds_')
        self.salu = op.startswith('s_')
        self.dpp = ('_dpp' in op) or ('row_' in self.mods) or ('quad_perm' in self.mods)
        self.permlane = op.startswith('v_permlane')
        self.rdlane = op.startswith(('v_readlane', 'v_readfirstlane'))
        self.branch = op.startswith(('s_cbranch', 's_branch'))
        R = [regs_of(o) for o in self.ops]
        self.w = set(); self.r = set(); self.srcC = set(); self.srcAB = set(); self.stdata = set()
        allr = lambda l: set().union(*l) if l else set()
        if self.mfma:
            self.w = R[0]; self.srcAB = R[1] | R[2]; self.srcC = R[3]; self.r = self.srcAB | self.srcC
        elif self.permlane:
            self.w = R[0] | R[1]; self.r = R[0] | R[1]
        elif op.startswith('v_cmp'):
            self.w = R[0]; self.r = allr(R[1:])
            if op.startswith('v_cmpx'): self.w |= {('s', 'exec')}
        elif self.valu:
            self.w = R[0]; self.r = allr(R[1:])
            if op.startswith(('v_add_co', 'v_sub_co', 'v_addc_co', 'v_subb_co', 'v_mad_u64', 'v_div_scale')):
                self.w |= R[1]; self.r = allr(R[2:])
            if op.startswith(('v_fmac', 'v_dot2c', 'v_pk_fmac', 'v_mac')) or self.dpp or 'v_writelane' in op:
                self.r |= R[0]
            if op.startswith('v_cndmask') and len(self.ops) == 3: self.r |= {('s', 'vcc')}
        elif self.vmem:
            if '_load' in op:
                if ' lds' in (' ' + self.mods): self.r = allr(R)
                else: self.w = R[0]; self.r = allr(R[1:])
            elif '_store' in op:
                self.r = allr(R)
                data = R[0] if op.startswith('buffer_') else R[1]
                if 'x3' in op or 'x4' in op: self.stdata = data
            else:
                self.r = allr(R)
                if 'sc0' in self.mods: self.w = R[0]
        elif self.ds:
            if op.startswith(('ds_read', 'ds_bpermute', 'ds_permute', 'ds_swizzle')) or '_rtn' in op:
                self.w = R[0]; self.r = allr(R[1:])
            else: self.r = allr(R)
        elif self.salu:
            if op.startswith(('s_cmp', 's_bitcmp')): self.r = allr(R); self.w = {('s', 'scc')}
            elif op.startswith(('s_waitcnt', 's_barrier', 's_nop', 's_endpgm', 's_sleep', 's_setprio', 's_branch', 's_cbranch')): pass
            else:
                self.w = R[0] if R else set(); self.r = allr(R[1:])
                if 'saveexec' in op: self.w |= {('s', 'exec')}
    def states(self):
        if self.op == 's_nop': return int(self.ops[0], 0) + 1
        return 1

def isv(rs): return {x for x in rs if x[0] in 'va'}
def iss(rs): return {x for x in rs if x[0] == 's'}

def need(P, C):
    n = 0
    pv = isv(P.w); ps = iss(P.w)
    if P.valu:
        if C.mfma and (pv & C.r): n = max(n, 2)
        if C.permlane and (pv & (C.r | C.w)): n = max(n, 2)
        if C.dpp and C.valu and (pv & C.r): n = max(n, 2)
        if C.rdlane and (pv & C.r): n = max(n, 1)
        if P.trans and (pv & C.r) and (C.valu or C.mfma or C.vmem or C.ds): n = max(n, 1)
        if ps:
            if (C.valu or C.mfma) and (ps & C.r): n = max(n, 4 if C.rdlane or 'writelane' in C.op else 2)
            if C.vmem and (ps & C.r): n = max(n, 5)
            if ('s', 'exec') in ps and (C.dpp): n = max(n, 5)
            if ('s', 'exec') in ps and (C.mfma or C.rdlane or C.permlane): n = max(n, 4)
        if ('sdwa' in P.op or 'op_sel' in P.mods) and (pv & C.r): n = max(n, 1)
    if P.mfma:
        big = '32x32' in P.op
        lat = 12 if big else 8
        if C.mfma:
            if P.w & C.srcAB: n = max(n, lat)
            if P.w & C.srcC and P.w != C.srcC: n = max(n, lat - 2)
            if P.w & C.w and not (P.w == C.w and P.w == C.srcC):
                n = max(n, lat - 2)
        else:
            if P.w & (C.r | C.w): n = max(n, lat)
        if C.valu and (P.srcC & C.w): n = max(n, 7 if big else 3)
    if P.stdata:
        if C.valu and (P.stdata & C.w): n = max(n, 2)
        elif (P.stdata & C.w): n = max(n, 1)
    return n

class Asm:
    def __init__(self):
        self.items = []
    def i(self, text): self.items.append(('i', Ins(text)))
    def __call__(self, text):
        for ln in text.strip('\n').split('\n'):
            s = ln.strip()
            if not s or s.startswith(';'):
                if s: self.items.append(('t', '  ' + s))
                continue
            if s.endswith(':'): self.items.append(('l', s[:-1]))
            else: self.i(s)
    def label(self, n): self.items.append(('l', n))
    def t(self, text): self.items.append(('t', text))
    def render(self, window=14):
        snaps = {}
        out = None
        for it in range(3):
            out = []; hist = []
            alt = []
            nn = 0
            for kind, x in self.items:
                if kind == 't': out.append(x); continue
                if kind == 'l':
                    out.append(x + ':')
                    alt = alt + [list(h) for h in snaps.get(x, [])]
                    continue
                req = 0
                for h in [hist] + alt:
                    for (P, d) in h:
                        k = need(P, x) - d
                        if k > req: req = k
                def adv(n):
                    nonlocal hist, alt
                    hist = [(P, d + n) for (P, d) in hist if d + n < window]
                    alt = [[(P, d + n) for (P, d) in h if d + n < window] for h in alt]
                    alt = [h for h in alt if h]
                while req > 0:
                    k = min(req, 16)
                    out.append('  s_nop %d' % (k - 1)); adv(k); req -= k; nn += 1
                out.append('  ' + x.text)
                adv(x.states())
                hist.append((x, 0))
                if x.branch:
                    tgt = x.ops[0]
                    hs = [list(hist)] + [list(h) for h in alt]
                    lst = snaps.setdefault(tgt, [])
                    key = [tuple((id(P), d) for P, d in h) for h in hs]
                    if it == 0 or True:
                        lst.extend(hs)
                    if x.op == 's_branch': hist = []; alt = []
                if x.op == 's_endpgm': hist = []; alt = []
            self.nnops = nn
            for k, lst in snaps.items():
                m = {}
                for h in lst:
                    for P, d in h:
                        if id(P) not in m or d < m[id(P)][1]: m[id(P)] = (P, d)
                snaps[k] = [list(m.values())]
        return '\n'.join(out) + '\n'
```

```python
import sys, struct
from asmlib import Asm
NAME = "parallel_sum__gqa_block_cached__glu_gated_geglu__decode"

XI, QP, GU, P2, ML, P3 = 0x8000, 0x10000, 0x90000, 0x180000, 0x200000, 0x210000
BOFF = 0x300000
WS_SIZE = 0x480000
STAMP = 0x1000000
L_FLAG = 0
L_PROG = 8
L_Q = 64
L_XN0 = 1408
L_XN1 = L_XN0 + 4352
L_PART = L_XN1 + 4352
L_MM = L_PART + 18432
L_LL = L_MM + 128
L_OB = L_LL + 128
L_HB = L_OB + 4 * 144
L_END = L_HB + 4 * 80
L_STAMP = (L_END + 63) // 64 * 64
LDS_BYTES = (L_STAMP + 512 + 255) // 256 * 256

sX_, sK_, sV_, sWQ_, sWO_, sWG_, sWU_ = 16, 18, 20, 22, 24, 28, 30
sWD_, sOUT_, sDBG_, sWS_ = 32, 34, 36, 38
SK, SV, SWS, SA, SB2, SX, SOUT = 40, 44, 48, 52, 56, 60, 64
T = [68, 69, 70, 71]; TLO, THI = 72, 73
HKV, RR, BB, SS, WV = 74, 75, 76, 77, 78
MODE = 79
M1, M2, M3 = 12, 14, 26
KB, VB, QF, SC, PB, WB, TM = 16, 80, 144, 160, 176, 184, 232
LOG2E = 1.4426950408889634
def f2u(x): return struct.unpack('<I', struct.pack('<f', x))[0]
def srd(a, d, base, size):
    a(f"s_mov_b32 s{d}, s{base}"); a(f"s_mov_b32 s{d+1}, s{base+1}")
    a(f"s_mov_b32 s{d+2}, {size}"); a(f"s_mov_b32 s{d+3}, 0x20000")
def vr(b, n=4): return f"v[{b}:{b+n-1}]"

class Gen:
    def __init__(self, stamps=False, mimic=True, spin=200000, win=4, pro=False, exp='', local=True):
        self.a = Asm(); self.stamps = stamps; self.mimic = mimic; self.spin = spin
        self.win = win; self.pro = pro; self.exp = exp; self.uid = 0; self.local = local
    def lab(self, p):
        self.uid += 1; return f"L_{p}_{self.uid}"
    def stamp(self, idx, kind='m'):
        if not self.stamps: return
        slot = {'m': idx, 'p': {2: 8, 3: 9, 4: 10, 1: 11, 6: 12, 5: 13}.get(idx, 15), 't': None}[kind] if kind != 't' else None
        if kind == 't':
            slot = {5: 6, 6: 7, 1: 8, 2: 9, 3: 10, 4: 12, 7: 13}[idx] if not self.pro else None
            if slot is None: return
        if kind == 'p' and not self.pro: return
        a = self.a
        a("s_memrealtime s[84:85]")
        a("s_waitcnt lgkmcnt(0)")
        a("v_mov_b32 v6, s84")
        a(f"ds_write_b32 v7, v6 offset:{L_STAMP + 4*slot}")

    def perm_tile(self, src, dst, pairs=range(4)):
        a = self.a
        for aa in pairs:
            for j in range(4):
                r0 = src + 4 * (2 * aa) + j; r1 = src + 4 * (2 * aa + 1) + j
                a(f"v_perm_b32 v{dst + 4*(2*j) + aa}, v{r1}, v{r0}, s80")
                a(f"v_perm_b32 v{dst + 4*(2*j+1) + aa}, v{r1}, v{r0}, s81")
    def perm_consts(self):
        self.a("s_mov_b32 s80, 0x05040100"); self.a("s_mov_b32 s81, 0x07060302")
    def sel_masks(self):
        a = self.a
        for m, v in ((M1, 0x00f000f0), (M2, 0x0f000f00), (M3, 0xf000f000)):
            a(f"s_mov_b32 s{m}, 0x{v:08x}"); a(f"s_mov_b32 s{m+1}, 0x{v:08x}")
    def select_tag(self, acc, nd, dst):
        a = self.a
        for d in range(nd):
            a(f"v_cndmask_b32 v{dst+d}, v{acc+4*d}, v{acc+4*d+1}, s[{M1}:{M1+1}]")
        for d in range(nd):
            a(f"v_cndmask_b32 v{dst+d}, v{dst+d}, v{acc+4*d+2}, s[{M2}:{M2+1}]")
        for d in range(nd):
            a(f"v_cndmask_b32 v{dst+d}, v{dst+d}, v{acc+4*d+3}, s[{M3}:{M3+1}]")
        for d in range(nd):
            a(f"v_bfi_b32 v{dst+d}, v8, s{T[d & 3]}, v{dst+d}")

    def untag_check(self, regs, accreg):
        a = self.a
        for k, r in enumerate(regs):
            a(f"v_xor_b32 v{r}, s{T[k & 3]}, v{r}")
        n = len(regs)
        a(f"v_or3_b32 v{accreg}, v{regs[0]}, v{regs[1]}, v{regs[2]}")
        k = 3
        while k < n:
            if k + 1 < n:
                a(f"v_or3_b32 v{accreg}, v{accreg}, v{regs[k]}, v{regs[k+1]}"); k += 2
            else:
                a(f"v_or_b32 v{accreg}, v{accreg}, v{regs[k]}"); k += 1
        a(f"v_and_b32 v{accreg}, v8, v{accreg}")
        a(f"v_cmp_ne_u32 vcc, 0, v{accreg}")
    def spin_begin(self): self.a("s_mov_b32 s83, 0")
    def spin_check(self, retry, sleep=1):
        a = self.a; ok = self.lab("ok")
        a(f"s_cbranch_vccz {ok}")
        a("s_add_u32 s83, s83, 1")
        a(f"s_cmp_lt_u32 s83, {self.spin}")
        a(f"s_cbranch_scc0 {ok}")
        if sleep: a(f"s_sleep {sleep}")
        a(f"s_branch {retry}")
        a(f"{ok}:")

    def layernorm(self, ldsbase):
        a = self.a
        XR, XF, ST = 144, 176, 208
        for b in range(4):
            for j in range(4):
                a(f"v_lshlrev_b32 v{XF + 8*b + 2*j}, 16, v{XR + 4*b + j}")
                a(f"v_and_b32 v{XF + 8*b + 2*j + 1}, 0xffff0000, v{XR + 4*b + j}")
        for b in range(4):
            a(f"v_add_f32 v{ST + b}, v{XF + 8*b}, v{XF + 8*b + 1}")
            a(f"v_mul_f32 v{ST + 4 + b}, v{XF + 8*b}, v{XF + 8*b}")
        for e in range(1, 8):
            for b in range(4):
                if e >= 2: a(f"v_add_f32 v{ST + b}, v{ST + b}, v{XF + 8*b + e}")
                a(f"v_fmac_f32 v{ST + 4 + b}, v{XF + 8*b + e}, v{XF + 8*b + e}")
        for sh in ("row_shr:1", "row_shr:2", "row_shr:4", "row_shr:8"):
            for k in range(8):
                a(f"v_add_f32_dpp v{ST + k}, v{ST + k}, v{ST + k} {sh} row_mask:0xf bank_mask:0xf bound_ctrl:0")
        for k in range(8):
            a(f"v_add_f32_dpp v{ST + k}, v{ST + k}, v{ST + k} row_bcast:15 row_mask:0xa bank_mask:0xf")
        for k in range(8):
            a(f"v_add_f32_dpp v{ST + k}, v{ST + k}, v{ST + k} row_bcast:31 row_mask:0xc bank_mask:0xf")
        LS = [12, 13, 14, 15, 26, 27, 4, 5]
        for k in range(8):
            a(f"v_readlane_b32 s{LS[k]}, v{ST + k}, 63")
        for b in range(4):
            M, R, U = 216 + b, 220 + b, 224 + b
            a(f"v_mov_b32 v{U}, 0x3b000000")
            a(f"v_mul_f32 v{M}, s{LS[b]}, v{U}")
            a(f"v_mul_f32 v{R}, s{LS[4 + b]}, v{U}")
            a(f"v_fma_f32 v{R}, -v{M}, v{M}, v{R}")
            a(f"v_cvt_pk_bf16_f32 v{M}, v{M}, v{R}")
            a(f"v_and_b32 v{R}, 0xffff0000, v{M}")
            a(f"v_lshlrev_b32 v{M}, 16, v{M}")
            a(f"v_add_f32 v{R}, 0x{f2u(1e-5):08x}, v{R}")
            a(f"v_cvt_pk_bf16_f32 v{R}, v{R}, v{R}")
            a(f"v_lshlrev_b32 v{R}, 16, v{R}")
            a(f"v_sqrt_f32 v{R}, v{R}")
            a(f"v_cvt_pk_bf16_f32 v{R}, v{R}, v{R}")
            a(f"v_lshlrev_b32 v{R}, 16, v{R}")
            a(f"v_rcp_f32 v{R}, v{R}")
        for b in range(4):
            M, R = 216 + b, 220 + b
            for j in range(4):
                x0, x1 = XF + 8*b + 2*j, XF + 8*b + 2*j + 1
                a(f"v_sub_f32 v{x0}, v{x0}, v{M}")
                a(f"v_sub_f32 v{x1}, v{x1}, v{M}")
                a(f"v_cvt_pk_bf16_f32 v{x1}, v{x0}, v{x1}")
                a(f"v_lshlrev_b32 v{x0}, 16, v{x1}")
                a(f"v_and_b32 v{x1}, 0xffff0000, v{x1}")
                a(f"v_mul_f32 v{x0}, v{x0}, v{R}")
                a(f"v_mul_f32 v{x1}, v{x1}, v{R}")
                a(f"v_cvt_pk_bf16_f32 v{XR + 4*b + j}, v{x0}, v{x1}")
        a(f"v_lshlrev_b32 v9, 4, v1")
        for b in range(4):
            a(f"ds_write_b128 v9, {vr(XR + 4*b)} offset:{ldsbase + b*1088}")

    def kload(self, tau, jj):
        P, e = tau >> 1, tau & 1
        so = "0" if P == 0 else f"s{8 + P}"
        self.a(f"buffer_load_dwordx4 {vr(KB + 8*tau + 4*jj)}, v4, s[{SK}:{SK+3}], {so} offen offset:{e*512 + jj*128} nt")
    def vload(self, Tt, i):
        off = Tt * 8192 + i * 1024
        hi, lo = off // 4096, off % 4096
        so = "0" if hi == 0 else f"s{8 + hi}"
        self.a(f"buffer_load_dwordx4 {vr(VB + 32*Tt + 4*i)}, v5, s[{SV}:{SV+3}], {so} offen offset:{lo} nt")
    def kloads(self, start=0, end=16):
        for n in range(start, end): self.kload(n >> 1, n & 1)
    def vloads(self):
        for Tt in range(2):
            for i in range(8): self.vload(Tt, i)
    def consts_kv(self):
        a = self.a
        a("s_mov_b32 s9, 4096"); a("s_mov_b32 s10, 8192"); a("s_mov_b32 s11, 12288")
    def make_tags(self):
        a = self.a
        a("s_waitcnt lgkmcnt(0)")
        a(f"s_add_u32 s{TLO}, s{TLO}, 0x00100401")
        a(f"s_add_u32 s{THI}, s{THI}, 1")
        a(f"s_and_b32 s{T[0]}, s{TLO}, 0x3ff")
        a(f"s_bfe_u32 s{T[1]}, s{TLO}, 0xa000a")
        a(f"s_bfe_u32 s{T[2]}, s{TLO}, 0xa0014")
        a(f"s_and_b32 s{T[3]}, s{THI}, 0x3ff")
    def wait_qflag(self):
        a = self.a
        self.spin_begin()
        a("v_mov_b32 v9, 0")
        rt = self.lab("qflag"); ok = self.lab("ok")
        a(f"{rt}:")
        a(f"ds_read_b32 v10, v9 offset:{L_FLAG}")
        a("s_waitcnt lgkmcnt(0)")
        a("v_cmp_ne_u32 vcc, 1, v10")
        a(f"s_cbranch_vccz {ok}")
        a("s_add_u32 s83, s83, 1")
        a(f"s_cmp_lt_u32 s83, {self.spin*8}")
        a(f"s_cbranch_scc0 {ok}")
        a("s_sleep 1")
        a(f"s_branch {rt}")
        a(f"{ok}:")

    def build(self):
        a = self.a
        a.t(f"; @launch grid=(256,1,1) block=(512,1,1) lds={LDS_BYTES}")
        a.t('.amdgcn_target "amdgcn-amd-amdhsa--gfx950"')
        a.t(".text"); a.t(f".globl {NAME}_kernel"); a.t(".p2align 8"); a.t(f".type {NAME}_kernel,@function")
        a(f"{NAME}_kernel:")
        a("s_cmp_ge_u32 s2, 256")
        a("s_cbranch_scc1 L_end")
        if self.stamps:
            a("s_memrealtime s[84:85]")
        a("s_load_dwordx16 s[16:31], s[0:1], 0")
        a("s_load_dwordx8 s[32:39], s[0:1], 64")
        a("v_and_b32 v1, 63, v0")
        a("v_lshrrev_b32 v6, 6, v0")
        a("v_lshrrev_b32 v2, 4, v1")
        a("v_and_b32 v3, 15, v1")
        a(f"v_readfirstlane_b32 s{WV}, v6")
        a(f"s_and_b32 s{HKV}, s2, 7")
        a(f"s_lshr_b32 s{RR}, s2, 3")
        a(f"s_lshr_b32 s{BB}, s{RR}, 3")
        a(f"s_and_b32 s{SS}, s{RR}, 7")
        a(f"s_lshl_b32 s4, s{BB}, 3")
        a(f"s_add_u32 s4, s4, s{HKV}")
        a(f"s_lshl_b32 s4, s4, 20")
        a(f"s_lshl_b32 s5, s{SS}, 17")
        a(f"s_add_u32 s4, s4, s5")
        a(f"s_lshl_b32 s5, s{WV}, 14")
        a(f"s_add_u32 s4, s4, s5")
        a("v_lshlrev_b32 v5, 4, v1")
        a("v_add_u32 v5, s4, v5")
        a("v_and_b32 v6, 3, v3")
        a("v_lshlrev_b32 v6, 2, v6")
        a("v_bfe_u32 v7, v3, 2, 1")
        a("v_add_u32 v6, v6, v7")
        a("v_lshlrev_b32 v6, 8, v6")
        a("v_lshrrev_b32 v7, 3, v3")
        a("v_lshl_add_u32 v6, v7, 6, v6")
        a("v_lshl_add_u32 v6, v2, 4, v6")
        a("v_add_u32 v4, s4, v6")
        a("v_mov_b32 v8, 0x3ff")
        if self.stamps:
            a("v_and_b32 v7, 0x1c0, v0")
            a("v_and_b32 v6, 15, v1")
            a("v_lshl_add_u32 v6, v6, 2, v7")
            a("v_mov_b32 v9, 0")
            a(f"ds_write_b32 v6, v9 offset:{L_STAMP}")
            a("s_waitcnt lgkmcnt(0)")
            a("v_mov_b32 v6, s84")
            a(f"ds_write_b32 v7, v6 offset:{L_STAMP}")
        a("v_mov_b32 v9, 0")
        a("v_mov_b32 v10, 0")
        a("v_mov_b32 v11, 0")
        a(f"ds_write_b64 v9, v[10:11] offset:{L_FLAG}")
        a(f"ds_write_b32 v9, v9 offset:{L_PROG}")
        self.consts_kv()
        a(f"s_add_u32 s4, s{WV}, 6")
        a("s_and_b32 s4, s4, 7")
        a("s_lshl_b32 s5, s4, 2")
        a(f"s_sub_u32 s100, s5, 2")
        a("s_cmp_eq_u32 s4, 0")
        a("s_cselect_b32 s100, 0, s100")
        a(f"s_add_u32 s101, s5, 4")
        a("s_cmp_eq_u32 s4, 7")
        a("s_cselect_b32 s101, 30, s101")
        a(f"s_add_i32 s100, s100, {4 - self.win + 1}")
        a(f"s_add_i32 s101, s101, {4 - self.win + 1}")
        a("s_waitcnt lgkmcnt(0)")
        srd(a, SK, sK_, 33554432)
        srd(a, SV, sV_, 33554432)
        srd(a, SWS, sWS_, WS_SIZE)
        srd(a, SX, sX_, 4096)
        a(f"s_load_dwordx2 s[{TLO}:{THI}], s[{sWS_}:{sWS_+1}], 0")
        if 'noq' in self.exp:
            a("s_barrier")
            self.make_tags()
            a(f"s_cmp_lt_u32 s{WV}, 2")
            a("s_cbranch_scc0 L_stream")
            self.signal(2)
            a("v_mov_b32 v10, 1")
            a(f"ds_write_b32 v9, v10 offset:{L_FLAG}")
            a(f"ds_write_b32 v9, v10 offset:{L_FLAG+4}")
            a("s_branch L_stream")
        a(f"s_cmp_eq_u32 s{WV}, 0")
        a("s_cbranch_scc1 L_w0_pre")
        a(f"s_cmp_eq_u32 s{WV}, 1")
        a("s_cbranch_scc1 L_w1_pre")
        a("s_barrier")
        self.make_tags()
        a("s_branch L_stream")
        self.w0_pre()
        self.w1_pre()
        self.stream()
        a("L_bar1:")
        a("s_waitcnt lgkmcnt(0)")
        a("s_barrier")
        a(f"s_cmp_ge_u32 s{WV}, 2")
        a("s_cbranch_scc1 L_fin")
        self.tail()
        a("L_fin:")
        self.emit_stamps()
        a("L_end:")
        a("s_endpgm")
        a.t('.section .rodata,"a"'); a.t(".p2align 6"); a.t(f".amdhsa_kernel {NAME}_kernel")
        for l in ("next_free_vgpr 256", "next_free_sgpr 102", "accum_offset 256", "group_segment_fixed_size 0", "kernarg_size 96",
                  "user_sgpr_count 2", "user_sgpr_kernarg_segment_ptr 1", "system_sgpr_workgroup_id_x 1"):
            a.t("  .amdhsa_" + l)
        a.t(".end_amdhsa_kernel")
        return a.render()

    def xloads(self):
        a = self.a
        a("v_lshlrev_b32 v9, 4, v1")
        for b in range(4):
            a(f"buffer_load_dwordx4 {vr(144 + 4*b)}, v9, s[{SX}:{SX+3}], 0 offen offset:{b*1024}")

    def w0_pre(self):
        a = self.a
        a("L_w0_pre:")
        srd(a, SA, sWQ_, 4194304)
        self.xloads()
        a(f"s_lshr_b32 s4, s{RR}, 2")
        a(f"s_lshl_b32 s4, s4, 19")
        a(f"s_and_b32 s5, s{RR}, 3")
        a(f"s_lshl_b32 s5, s5, 8")
        a(f"s_add_u32 s4, s4, s5")
        a(f"s_lshl_b32 s5, s{HKV}, 10")
        a(f"s_add_u32 s4, s4, s5")
        a("v_lshlrev_b32 v10, 16, v2")
        a("v_lshl_add_u32 v10, v3, 4, v10")
        a("v_add_u32 v10, s4, v10")
        a("s_mov_b32 s6, 0")
        for st in range(2):
            for i in range(8):
                a(f"buffer_load_dwordx4 {vr(VB + 32*st + 4*i)}, v10, s[{SA}:{SA+3}], s6 offen nt")
                a(f"s_add_u32 s6, s6, 8192")
            if st == 0: a(f"s_add_u32 s6, s6, {24*8192}")
        a("s_barrier")
        a("s_waitcnt vmcnt(16)")
        self.stamp(2, 'p')
        self.layernorm(L_XN0)
        self.stamp(3, 'p')
        a(f"s_lshr_b32 s4, s{RR}, 2")
        a(f"s_lshl_b32 s4, s4, 7")
        a("v_and_b32 v9, 3, v3")
        a("v_mul_u32_u24 v9, 1088, v9")
        a("v_lshl_add_u32 v9, v2, 4, v9")
        a("v_add_u32 v9, s4, v9")
        a("s_waitcnt lgkmcnt(0)")
        a(f"ds_read_b128 {vr(216)}, v9 offset:{L_XN0}")
        a(f"ds_read_b128 {vr(220)}, v9 offset:{L_XN0 + 64}")
        self.perm_consts()
        self.sel_masks()
        a("s_waitcnt vmcnt(8)")
        self.signal()
        a("s_waitcnt vmcnt(0)")
        self.signal()
        self.stamp(4, 'p')
        AT, ACC = 144, 184
        for st in range(2):
            self.perm_tile(VB + 32*st, AT)
            if st == 0: a("s_waitcnt lgkmcnt(0)")
            for dp in range(8):
                c = "0" if st == 0 else vr(ACC + 4*dp)
                a(f"v_mfma_f32_16x16x32_bf16 {vr(ACC + 4*dp)}, {vr(AT + 4*dp)}, {vr(216 + 4*st)}, {c}")
        self.make_tags()
        a(f"s_lshl_b32 s4, s{HKV}, 16")
        a(f"s_lshr_b32 s5, s{RR}, 2")
        a(f"s_lshl_b32 s5, s5, 11")
        a(f"s_add_u32 s4, s4, s5")
        a(f"s_and_b32 s5, s{RR}, 3")
        a(f"s_lshl_b32 s5, s5, 9")
        a(f"s_add_u32 s4, s4, s5")
        a(f"s_add_u32 s4, s4, {QP}")
        a("v_and_b32 v9, 3, v3")
        a("v_lshlrev_b32 v9, 14, v9")
        a("v_lshrrev_b32 v10, 2, v3")
        a("v_lshl_add_u32 v9, v10, 6, v9")
        a("v_lshl_add_u32 v9, v2, 4, v9")
        a("v_add_u32 v9, s4, v9")
        a(f"s_getreg_b32 s{MODE}, hwreg(HW_REG_XCC_ID, 0, 4)")
        a(f"s_lshl_b32 s{MODE}, s{MODE}, 16")
        a(f"s_or_b32 s5, s{MODE}, s{T[0]}")
        a("v_mov_b32 v12, s5")
        a(f"v_mov_b32 v13, s{T[1]}")
        a(f"v_mov_b32 v14, s{T[2]}")
        a(f"v_mov_b32 v15, s{T[3]}")
        a(f"s_lshl_b32 s5, s{HKV}, 9")
        a(f"s_lshl_b32 s6, s{RR}, 4")
        a("s_add_u32 s5, s5, s6")
        a(f"s_add_u32 s5, s5, {XI}")
        a("v_mov_b32 v10, s5")
        self.select_tag(ACC, 8, AT)
        a(f"buffer_store_dwordx4 {vr(AT)}, v9, s[{SWS}:{SWS+3}], 0 offen")
        a(f"buffer_store_dwordx4 {vr(AT+4)}, v9, s[{SWS}:{SWS+3}], 0 offen offset:256")
        a("s_mov_b64 exec, 1")
        a(f"buffer_store_dwordx4 {vr(12)}, v10, s[{SWS}:{SWS+3}], 0 offen")
        a("s_mov_b64 exec, -1")
        a("v_mov_b32 v176, v9")
        a("v_mov_b32 v177, v10")
        a("s_mov_b32 s7, 0")
        self.stamp(1); self.stamp(1, 'p')
        a("v_and_b32 v9, 31, v1")
        a("v_lshlrev_b32 v9, 4, v9")
        a(f"s_lshl_b32 s5, s{HKV}, 9")
        a(f"s_add_u32 s5, s5, {XI}")
        a("v_add_u32 v9, s5, v9")
        def pubB():
            lb = self.lab("nb")
            a("s_cmp_eq_u32 s7, 0")
            a(f"s_cbranch_scc0 {lb}")
            a(f"s_mov_b32 s7, {BOFF}")
            a(f"buffer_store_dwordx4 {vr(AT)}, v176, s[{SWS}:{SWS+3}], s7 offen sc1")
            a(f"buffer_store_dwordx4 {vr(AT+4)}, v176, s[{SWS}:{SWS+3}], s7 offen offset:256 sc1")
            a("s_mov_b64 exec, 1")
            a(f"buffer_store_dwordx4 {vr(12)}, v177, s[{SWS}:{SWS+3}], s7 offen sc1")
            a("s_mov_b64 exec, -1")
            a(f"{lb}:")
        self.spin_begin()
        rt = self.lab("qpre"); la = self.lab("qa")
        a(f"{rt}:")
        a("s_mov_b32 s6, 0")
        a("s_and_b32 s5, s83, 15")
        a("s_cmp_eq_u32 s5, 15")
        if not self.local: a("s_cmp_eq_u32 s5, s5")
        a(f"s_cbranch_scc0 {la}")
        pubB()
        a(f"s_mov_b32 s6, {BOFF}")
        a(f"{la}:")
        a(f"buffer_load_dwordx4 {vr(184)}, v9, s[{SWS}:{SWS+3}], s6 offen sc1")
        a("s_waitcnt vmcnt(0)")
        a("v_and_b32 v188, 0xf0000, v184")
        a("v_xor_b32 v184, v188, v184")
        self.untag_check([184, 185, 186, 187], 10)
        self.spin_check(rt, sleep=0)
        a(f"v_cmp_ne_u32 vcc, s{MODE}, v188")
        a(f"s_mov_b32 s{MODE}, 1")
        a("s_cbranch_vccz L_mode_ok")
        a(f"s_mov_b32 s{MODE}, 0")
        a("L_mode_ok:")
        if not self.local: a(f"s_mov_b32 s{MODE}, 0")
        a(f"s_cmp_eq_u32 s{MODE}, 1")
        a("s_cbranch_scc1 L_mode_loc")
        pubB()
        a("L_mode_loc:")
        self.stamp(6, 'p')
        a(f"s_lshl_b32 s4, s{HKV}, 16")
        a(f"s_lshl_b32 s5, s{BB}, 14")
        a(f"s_add_u32 s4, s4, s5")
        a(f"s_add_u32 s4, s4, {QP}")
        a(f"s_cmp_eq_u32 s{MODE}, 1")
        a(f"s_cselect_b32 s5, 0, {BOFF}")
        a("s_add_u32 s4, s4, s5")
        a("v_lshlrev_b32 v9, 4, v1")
        a("v_add_u32 v9, s4, v9")
        rt = self.lab("qfull")
        a(f"{rt}:")
        a("s_mov_b32 s6, 0")
        for ks in range(8):
            a(f"buffer_load_dwordx4 {vr(184 + 8*ks)}, v9, s[{SWS}:{SWS+3}], s6 offen sc1")
            a(f"buffer_load_dwordx4 {vr(188 + 8*ks)}, v9, s[{SWS}:{SWS+3}], s6 offen offset:1024 sc1")
            if ks < 7: a("s_add_u32 s6, s6, 2048")
        a("s_waitcnt vmcnt(0)")
        self.untag_check(list(range(184, 248)), 10)
        self.spin_check(rt, sleep=0)
        for ks in range(1, 8):
            for k in range(8):
                a(f"v_add_f32 v{184 + k}, v{184 + k}, v{184 + 8*ks + k}")
        a("v_cvt_pk_bf16_f32 v184, v184, v185")
        a("v_cvt_pk_bf16_f32 v185, v186, v187")
        a("v_cvt_pk_bf16_f32 v186, v188, v189")
        a("v_cvt_pk_bf16_f32 v187, v190, v191")
        a("v_lshrrev_b32 v9, 5, v1")
        a("v_mul_u32_u24 v9, 320, v9")
        a("v_and_b32 v10, 3, v1")
        a("v_lshl_add_u32 v9, v10, 6, v9")
        a("v_bfe_u32 v10, v1, 2, 2")
        a("v_lshl_add_u32 v9, v10, 4, v9")
        a("v_bfe_u32 v10, v1, 4, 1")
        a("v_lshl_add_u32 v9, v10, 3, v9")
        a(f"ds_write_b64 v9, v[184:185] offset:{L_Q}")
        a(f"ds_write_b64 v9, v[186:187] offset:{L_Q + 640}")
        a("v_mov_b32 v9, 0")
        a(f"v_mov_b32 v10, s{MODE}")
        a(f"ds_write_b32 v9, v10 offset:{L_FLAG + 4}")
        a("s_waitcnt lgkmcnt(0)")
        a("v_mov_b32 v10, 1")
        a(f"ds_write_b32 v9, v10 offset:{L_FLAG}")
        self.stamp(5); self.stamp(5, 'p')
        a("s_branch L_stream")

    def w1_pre(self):
        a = self.a
        a("L_w1_pre:")
        srd(a, SA, sWG_, 512*3584)
        srd(a, SB2, sWU_, 512*3584)
        a(f"s_cmp_ge_u32 s{HKV}, 7")
        a("s_cbranch_scc1 L_w1_skip")
        self.xloads()
        a(f"s_and_b32 s3, s{RR}, 15")
        a(f"s_lshr_b32 s7, s{RR}, 4")
        a(f"s_lshl_b32 s5, s{HKV}, 1")
        a("s_add_u32 s7, s7, s5")
        a(f"s_mul_i32 s4, s3, {32*3584}")
        a("s_lshl_b32 s5, s7, 8")
        a("s_add_u32 s4, s4, s5")
        a(f"v_mul_u32_u24 v10, {8*3584}, v2")
        a("v_lshl_add_u32 v10, v3, 4, v10")
        a("v_add_u32 v10, s4, v10")
        for mtx, sr in ((0, SA), (1, SB2)):
            a("s_mov_b32 s6, 0")
            for i in range(8):
                a(f"buffer_load_dwordx4 {vr(VB + 32*mtx + 4*i)}, v10, s[{sr}:{sr+3}], s6 offen nt")
                if i < 7: a(f"s_add_u32 s6, s6, 3584")
        a("s_barrier")
        a("s_waitcnt vmcnt(16)")
        self.stamp(2, 'p')
        self.layernorm(L_XN1)
        self.stamp(3, 'p')
        a(f"s_lshl_b32 s4, s3, 6")
        a("v_and_b32 v9, 3, v3")
        a("v_mul_u32_u24 v9, 1088, v9")
        a("v_lshl_add_u32 v9, v2, 4, v9")
        a("v_add_u32 v9, s4, v9")
        a("s_waitcnt lgkmcnt(0)")
        a(f"ds_read_b128 {vr(176)}, v9 offset:{L_XN1}")
        self.perm_consts()
        self.sel_masks()
        a("s_waitcnt vmcnt(8)")
        self.signal()
        a("s_waitcnt vmcnt(0)")
        self.signal()
        self.stamp(4, 'p')
        AT = 144; ACCS = (184, 216)
        for mtx in range(2):
            self.perm_tile(VB + 32*mtx, AT)
            if mtx == 0: a("s_waitcnt lgkmcnt(0)")
            for dp in range(8):
                a(f"v_mfma_f32_16x16x32_bf16 {vr(ACCS[mtx] + 4*dp)}, {vr(AT + 4*dp)}, {vr(176)}, 0")
        self.make_tags()
        a("s_lshl_b32 s4, s7, 16")
        a("s_lshl_b32 s5, s3, 9")
        a("s_add_u32 s4, s4, s5")
        a(f"s_add_u32 s4, s4, {GU}")
        a("v_and_b32 v9, 3, v3")
        a("v_lshlrev_b32 v9, 7, v9")
        a("v_lshrrev_b32 v10, 2, v3")
        a("v_lshl_add_u32 v9, v10, 14, v9")
        a("v_lshl_add_u32 v9, v2, 4, v9")
        a("v_add_u32 v9, s4, v9")
        a("s_mov_b32 s6, 8192")
        self.select_tag(ACCS[0], 8, AT)
        self.select_tag(ACCS[1], 8, AT + 8)
        def gustores(so0, so1, fl):
            a(f"buffer_store_dwordx4 {vr(AT)}, v176, s[{SWS}:{SWS+3}], {so0} offen{fl}")
            a(f"buffer_store_dwordx4 {vr(AT+4)}, v176, s[{SWS}:{SWS+3}], {so0} offen offset:64{fl}")
            a(f"buffer_store_dwordx4 {vr(AT+8)}, v176, s[{SWS}:{SWS+3}], {so1} offen{fl}")
            a(f"buffer_store_dwordx4 {vr(AT+12)}, v176, s[{SWS}:{SWS+3}], {so1} offen offset:64{fl}")
        a("v_mov_b32 v176, v9")
        gustores("0", "s6", "")
        self.stamp(1); self.stamp(1, 'p')
        self.wait_qflag()
        a("v_mov_b32 v12, 0")
        a(f"ds_read_b32 v12, v12 offset:{L_FLAG + 4}")
        a("s_waitcnt lgkmcnt(0)")
        a(f"v_readfirstlane_b32 s{MODE}, v12")
        a(f"s_cmp_eq_u32 s{MODE}, 1")
        a("s_cbranch_scc1 L_w1_h")
        a(f"s_mov_b32 s4, {BOFF}")
        a(f"s_mov_b32 s5, {BOFF + 8192}")
        gustores("s4", "s5", " sc1")
        a("s_branch L_w1_h")
        a("L_w1_skip:")
        a("s_barrier")
        self.signal(2)
        self.make_tags()
        self.wait_qflag()
        a("L_w1_h:")
        self.hgather()
        a("s_waitcnt vmcnt(0)")
        self.stamp(5); self.stamp(5, 'p')

    def hgather(self):
        a = self.a
        a(f"s_and_b32 s4, s{RR}, 3")
        a(f"s_lshl_b32 s5, s{HKV}, 2")
        a("s_add_u32 s4, s4, s5")
        a("s_lshl_b32 s7, s4, 1")
        a(f"s_bfe_u32 s5, s{RR}, 0x10002")
        a("s_add_u32 s7, s7, s5")
        a("v_bfe_u32 v9, v1, 3, 2")
        a("v_mul_u32_u24 v11, 80, v9")
        a("v_and_b32 v10, 7, v1")
        a("v_lshl_add_u32 v11, v10, 3, v11")
        G0 = 184
        a("s_cmp_ge_u32 s7, 56")
        a("s_cbranch_scc1 L_h_zero")
        a("s_lshr_b32 s4, s7, 2")
        a("s_lshl_b32 s4, s4, 16")
        a("s_and_b32 s5, s7, 3")
        a("s_lshl_b32 s5, s5, 14")
        a("s_add_u32 s4, s4, s5")
        a(f"s_add_u32 s4, s4, {GU}")
        a("v_mov_b32 v12, 0")
        a(f"ds_read_b32 v12, v12 offset:{L_FLAG + 4}")
        a("s_waitcnt lgkmcnt(0)")
        a(f"v_readfirstlane_b32 s{MODE}, v12")
        a(f"s_cmp_eq_u32 s{MODE}, 1")
        a(f"s_cselect_b32 s5, 0, {BOFF}")
        a("s_add_u32 s4, s4, s5")
        a("v_lshrrev_b32 v12, 5, v1")
        a("v_lshlrev_b32 v12, 13, v12")
        a("v_lshl_add_u32 v12, v9, 7, v12")
        a("v_lshl_add_u32 v12, v10, 4, v12")
        a("v_add_u32 v12, s4, v12")
        self.spin_begin()
        rt = self.lab("hfull")
        a(f"{rt}:")
        for ks in range(16):
            hi, lo = (ks * 512) // 4096, (ks * 512) % 4096
            so = "0" if hi == 0 else "s9"
            a(f"buffer_load_dwordx4 {vr(G0 + 4*ks)}, v12, s[{SWS}:{SWS+3}], {so} offen offset:{lo} sc1")
        a("s_waitcnt vmcnt(0)")
        self.untag_check(list(range(G0, G0 + 64)), 13)
        self.spin_check(rt)
        for ks in range(1, 16):
            for e in range(4):
                a(f"v_add_f32 v{G0 + e}, v{G0 + e}, v{G0 + 4*ks + e}")
        a(f"v_cvt_pk_bf16_f32 v{G0}, v{G0}, v{G0+1}")
        a(f"v_cvt_pk_bf16_f32 v{G0+2}, v{G0+2}, v{G0+3}")
        a(f"v_and_b32 v{G0+1}, 0xffff0000, v{G0}")
        a(f"v_lshlrev_b32 v{G0}, 16, v{G0}")
        a(f"v_and_b32 v{G0+3}, 0xffff0000, v{G0+2}")
        a(f"v_lshlrev_b32 v{G0+2}, 16, v{G0+2}")
        for e in range(4): a(f"v_mov_b32 v{G0+4+e}, v{G0+e}")
        for e in range(4): a(f"v_permlane32_swap_b32 v{G0+e}, v{G0+4+e}")
        a(f"s_mov_b32 s4, 0x{f2u(0.044715):08x}")
        a(f"s_mov_b32 s5, 0x{f2u(-2.0 * 0.7978845608028654 * LOG2E):08x}")
        for e in range(4):
            g_, t_ = G0 + e, G0 + 8 + e
            a(f"v_mul_f32 v{t_}, v{g_}, v{g_}")
            a(f"v_mul_f32 v{t_}, s4, v{t_}")
            a(f"v_fma_f32 v{t_}, v{t_}, v{g_}, v{g_}")
            a(f"v_mul_f32 v{t_}, s5, v{t_}")
            a(f"v_exp_f32 v{t_}, v{t_}")
            a(f"v_add_f32 v{t_}, 1.0, v{t_}")
            a(f"v_rcp_f32 v{t_}, v{t_}")
            a(f"v_mul_f32 v{t_}, v{t_}, v{g_}")
        a(f"v_cvt_pk_bf16_f32 v{G0+8}, v{G0+8}, v{G0+9}")
        a(f"v_cvt_pk_bf16_f32 v{G0+10}, v{G0+10}, v{G0+11}")
        a(f"v_and_b32 v{G0+9}, 0xffff0000, v{G0+8}")
        a(f"v_lshlrev_b32 v{G0+8}, 16, v{G0+8}")
        a(f"v_and_b32 v{G0+11}, 0xffff0000, v{G0+10}")
        a(f"v_lshlrev_b32 v{G0+10}, 16, v{G0+10}")
        for e in range(4): a(f"v_mul_f32 v{G0+8+e}, v{G0+8+e}, v{G0+4+e}")
        a(f"v_cvt_pk_bf16_f32 v{G0}, v{G0+8}, v{G0+9}")
        a(f"v_cvt_pk_bf16_f32 v{G0+1}, v{G0+10}, v{G0+11}")
        a("s_branch L_h_wr")
        a("L_h_zero:")
        a(f"v_mov_b32 v{G0}, 0")
        a(f"v_mov_b32 v{G0+1}, 0")
        a("L_h_wr:")
        a("s_mov_b32 exec_hi, 0")
        a(f"ds_write_b64 v11, {vr(G0, 2)} offset:{L_HB}")
        a("s_mov_b64 exec, -1")

    def wait_vm(self, n_other, n_w7):
        a = self.a
        l7, ld = self.lab("w7"), self.lab("wd")
        a(f"s_cbranch_scc1 {l7}")
        a(f"s_waitcnt vmcnt({n_other})")
        a(f"s_branch {ld}")
        a(f"{l7}:")
        a(f"s_waitcnt vmcnt({n_w7})")
        a(f"{ld}:")


    def gate(self, sreg, add):
        a = self.a
        rt, ok = self.lab("gate"), self.lab("gok")
        a(f"s_add_i32 s4, s{sreg}, {add}")
        a("s_mov_b32 s83, 0")
        a("v_mov_b32 v9, 0")
        a(f"{rt}:")
        a(f"ds_read_b32 v10, v9 offset:{L_PROG}")
        a("s_waitcnt lgkmcnt(0)")
        a("v_readfirstlane_b32 s5, v10")
        a("s_cmp_ge_i32 s5, s4")
        a(f"s_cbranch_scc1 {ok}")
        a("s_add_u32 s83, s83, 1")
        a(f"s_cmp_lt_u32 s83, {self.spin*8}")
        a(f"s_cbranch_scc0 {ok}")
        a("s_sleep 1")
        a(f"s_branch {rt}")
        a(f"{ok}:")
    def signal(self, n=1):
        a = self.a
        a("v_mov_b32 v9, 0")
        a(f"v_mov_b32 v10, {n}")
        a("s_mov_b64 exec, 1")
        a(f"ds_add_u32 v9, v10 offset:{L_PROG}")
        a("s_mov_b64 exec, -1")

    def stream(self):
        a = self.a
        a("L_stream:")
        self.gate(100, 0)
        self.kloads(0, 8)
        self.gate(100, 1)
        self.kloads(8, 16)
        self.stamp(1)
        a("s_waitcnt vmcnt(8)")
        self.signal()
        a("s_waitcnt vmcnt(0)")
        self.signal()
        self.gate(101, 0)
        for i in range(8): self.vload(0, i)
        self.gate(101, 1)
        for i in range(8): self.vload(1, i)
        a(f"s_cmp_eq_u32 s{WV}, 1")
        a("s_cbranch_scc0 L_now1")
        self.wloads()
        a("L_now1:")
        a("v_mov_b32 v9, 0")
        a(f"ds_read_b32 v10, v9 offset:{L_FLAG}")
        a("s_waitcnt lgkmcnt(0)")
        a("v_cmp_ne_u32 vcc, 1, v10")
        a("s_cbranch_vccnz L_notready")
        self.stamp(2)
        self.qk_softmax()
        self.stamp(3)
        self.pv(True)
        a("s_branch L_pvdone")
        a("L_notready:")
        a(f"s_cmp_eq_u32 s{WV}, 1")
        self.wait_vm(8, 32)
        self.signal()
        a(f"s_cmp_eq_u32 s{WV}, 1")
        self.wait_vm(0, 24)
        self.signal()
        self.wait_qflag()
        self.stamp(2)
        self.qk_softmax()
        self.stamp(3)
        self.pv(False)
        a("L_pvdone:")
        self.stamp(4)
        a(f"s_cmp_eq_u32 s{WV}, 0")
        a("s_cbranch_scc0 L_bar1")
        self.wloads()

    def pv(self, waits):
        a = self.a
        self.perm_consts()
        AT, ACC = KB, KB + 32
        a(f"s_mul_i32 s4, s{WV}, {4*576}")
        a("v_mul_u32_u24 v11, 576, v3")
        a("v_lshl_add_u32 v11, v2, 4, v11")
        a("v_add_u32 v11, s4, v11")
        if waits:
            a(f"s_cmp_eq_u32 s{WV}, 1")
            self.wait_vm(8, 32)
            self.signal()
        self.perm_tile(VB, AT)
        for dp in range(8):
            a(f"v_mfma_f32_16x16x32_bf16 {vr(ACC + 4*dp)}, {vr(AT + 4*dp)}, {vr(PB)}, 0")
        for aa in range(4):
            if waits:
                a(f"s_cmp_eq_u32 s{WV}, 1")
                self.wait_vm(6 - 2*aa, 30 - 2*aa)
                if aa == 3: self.signal()
            self.perm_tile(VB + 32, AT, pairs=[aa])
        for dp in range(8):
            a(f"v_mfma_f32_16x16x32_bf16 {vr(ACC + 4*dp)}, {vr(AT + 4*dp)}, {vr(PB + 4)}, {vr(ACC + 4*dp)}")
        a("s_mov_b32 exec_lo, 0x000f000f"); a("s_mov_b32 exec_hi, 0x000f000f")
        for dp in range(8):
            a(f"ds_write_b128 v11, {vr(ACC + 4*dp)} offset:{L_PART + dp*64}")
        a("s_mov_b64 exec, -1")

    def qk_softmax(self):
        a = self.a
        a("v_and_b32 v9, 3, v3")
        a("v_mul_u32_u24 v9, 320, v9")
        a("v_lshl_add_u32 v9, v2, 4, v9")
        for jj in range(4):
            a(f"ds_read_b128 {vr(QF + 4*jj)}, v9 offset:{L_Q + jj*64}")
        a("s_waitcnt lgkmcnt(0)")
        for P in range(4):
            X = SC + 4*P
            Y, Z, W = (TM, TM + 4, TM + 8) if P % 2 == 0 else (TM + 12, TM + 16, TM + 20)
            t0, t1 = 2*P, 2*P + 1
            for (D, tau, q0, q1) in ((X, t0, 0, 2), (Y, t0, 1, 3), (Z, t1, 0, 2), (W, t1, 1, 3)):
                a(f"v_mfma_f32_16x16x32_bf16 {vr(D)}, {vr(KB + 8*tau)}, {vr(QF + 4*q0)}, 0")
            for (D, tau, q0, q1) in ((X, t0, 0, 2), (Y, t0, 1, 3), (Z, t1, 0, 2), (W, t1, 1, 3)):
                a(f"v_mfma_f32_16x16x32_bf16 {vr(D)}, {vr(KB + 8*tau + 4)}, {vr(QF + 4*q1)}, {vr(D)}")
            if P >= 1:
                self.qk_fix(P - 1)
        self.qk_fix(3)
        if self.mimic:
            a(f"s_mov_b32 s4, 0x{f2u(128 ** -0.5):08x}")
            for k in range(0, 16, 2):
                r0, r1 = SC + k, SC + k + 1
                a(f"v_cvt_pk_bf16_f32 v{r1}, v{r0}, v{r1}")
                a(f"v_lshlrev_b32 v{r0}, 16, v{r1}")
                a(f"v_and_b32 v{r1}, 0xffff0000, v{r1}")
                a(f"v_mul_f32 v{r0}, s4, v{r0}")
                a(f"v_mul_f32 v{r1}, s4, v{r1}")
                a(f"v_cvt_pk_bf16_f32 v{r1}, v{r0}, v{r1}")
                a(f"v_lshlrev_b32 v{r0}, 16, v{r1}")
                a(f"v_and_b32 v{r1}, 0xffff0000, v{r1}")
            cmul = LOG2E
        else:
            cmul = LOG2E * 128 ** -0.5
        a(f"v_max3_f32 v9, v{SC}, v{SC+1}, v{SC+2}")
        for k in range(3, 15, 2):
            a(f"v_max3_f32 v9, v9, v{SC+k}, v{SC+k+1}")
        a(f"v_max_f32 v9, v9, v{SC+15}")
        a("v_mov_b32 v10, v9")
        a("v_permlane32_swap_b32 v9, v10")
        a("v_max_f32 v9, v9, v10")
        a("v_mov_b32 v10, v9")
        a("v_permlane16_swap_b32 v9, v10")
        a("v_max_f32 v9, v9, v10")
        a(f"s_mov_b32 s4, 0x{f2u(cmul):08x}")
        a("v_mul_f32 v9, s4, v9")
        a("v_bfi_b32 v9, v8, 0, v9")
        for k in range(16): a(f"v_fma_f32 v{SC+k}, v{SC+k}, s4, -v9")
        for k in range(16): a(f"v_exp_f32 v{SC+k}, v{SC+k}")
        for k in range(0, 16, 2): a(f"v_cvt_pk_bf16_f32 v{PB + k//2}, v{SC+k}, v{SC+k+1}")
        for k in range(8):
            a(f"v_lshlrev_b32 v{SC + 2*k}, 16, v{PB + k}")
            a(f"v_and_b32 v{SC + 2*k + 1}, 0xffff0000, v{PB + k}")
        for k in range(8): a(f"v_add_f32 v{SC + k}, v{SC + k}, v{SC + k + 8}")
        for k in range(4): a(f"v_add_f32 v{SC + k}, v{SC + k}, v{SC + k + 4}")
        a(f"v_add_f32 v{SC}, v{SC}, v{SC+2}")
        a(f"v_add_f32 v{SC+1}, v{SC+1}, v{SC+3}")
        a(f"v_add_f32 v10, v{SC}, v{SC+1}")
        a("v_mov_b32 v11, v10")
        a("v_permlane32_swap_b32 v10, v11")
        a("v_add_f32 v10, v10, v11")
        a("v_mov_b32 v11, v10")
        a("v_permlane16_swap_b32 v10, v11")
        a("v_add_f32 v10, v10, v11")
        a(f"s_lshl_b32 s4, s{WV}, 2")
        a("v_lshlrev_b32 v11, 5, v3")
        a("v_add_u32 v11, s4, v11")
        a("s_mov_b32 exec_lo, 0xf"); a("s_mov_b32 exec_hi, 0")
        a(f"ds_write_b32 v11, v9 offset:{L_MM}")
        a(f"ds_write_b32 v11, v10 offset:{L_LL}")
        a("s_mov_b64 exec, -1")

    def qk_fix(self, P):
        a = self.a
        X = SC + 4*P
        Y, Z, W = (TM, TM + 4, TM + 8) if P % 2 == 0 else (TM + 12, TM + 16, TM + 20)
        for r in range(4):
            a(f"v_permlane32_swap_b32 v{X+r}, v{Z+r}")
            a(f"v_permlane32_swap_b32 v{Y+r}, v{W+r}")
        for r in range(4):
            a(f"v_add_f32 v{X+r}, v{X+r}, v{W+r}")

    def proj_ids(self):
        a = self.a
        a(f"s_and_b32 s4, s{RR}, 3")
        a(f"s_lshl_b32 s5, s{HKV}, 2")
        a("s_add_u32 s4, s4, s5")
        a("s_lshl_b32 s7, s4, 1")
        a(f"s_bfe_u32 s5, s{RR}, 0x10002")
        a("s_add_u32 s7, s7, s5")

    def wloads(self):
        a = self.a
        srd(a, SA, sWO_, 4194304)
        srd(a, SB2, sWD_, 1792*1024)
        self.proj_ids()
        a("s_lshl_b32 s4, s4, 7")
        a("s_lshl_b32 s5, s5, 2")
        a("s_add_u32 s4, s4, s5")
        a("s_lshl_b32 s4, s4, 10")
        a(f"s_lshr_b32 s5, s{RR}, 3")
        a("s_lshl_b32 s5, s5, 8")
        a(f"s_lshl_b32 s6, s{WV}, 7")
        a("s_add_u32 s5, s5, s6")
        a("s_add_u32 s4, s4, s5")
        a("v_and_b32 v12, 1, v2")
        a("v_lshlrev_b32 v12, 6, v12")
        a("v_lshrrev_b32 v13, 1, v2")
        a("v_add_u32 v14, v12, v13")
        a("v_lshlrev_b32 v14, 10, v14")
        a("v_lshl_add_u32 v14, v3, 3, v14")
        a("v_add_u32 v14, s4, v14")
        a("s_lshr_b32 s4, s7, 2")
        a("s_lshl_b32 s4, s4, 7")
        a("s_and_b32 s6, s7, 3")
        a("s_lshl_b32 s6, s6, 3")
        a("s_add_u32 s4, s4, s6")
        a("s_lshl_b32 s4, s4, 10")
        a("s_add_u32 s4, s4, s5")
        a("v_lshl_add_u32 v15, v13, 2, v12")
        a("v_lshlrev_b32 v15, 10, v15")
        a("v_lshl_add_u32 v15, v3, 3, v15")
        a("v_add_u32 v15, s4, v15")
        a("s_mov_b32 s6, 0")
        for i in range(8):
            for st in range(2):
                a(f"buffer_load_dwordx2 {vr(WB + 16*st + 2*i, 2)}, v14, s[{SA}:{SA+3}], s6 offen offset:{2*st*1024} nt")
            if i < 7: a("s_add_u32 s6, s6, 8192")
        a("s_mov_b32 s6, 32768")
        for i in range(8):
            so = "0" if i < 4 else "s6"
            a(f"buffer_load_dwordx2 {vr(WB + 32 + 2*i, 2)}, v15, s[{SB2}:{SB2+3}], {so} offen offset:{(i & 3)*1024} nt")

    def tail(self):
        a = self.a
        self.stamp(5, 't')
        a(f"s_lshl_b32 s4, s{WV}, 6")
        a("v_add_u32 v9, s4, v1")
        a("v_lshrrev_b32 v10, 5, v9")
        a("v_and_b32 v11, 31, v9")
        a("v_mul_u32_u24 v12, 576, v10")
        a("v_lshl_add_u32 v12, v11, 4, v12")
        a("v_lshlrev_b32 v13, 5, v10")
        D0, M0, L0 = 16, 48, 56
        a(f"ds_read_b128 {vr(M0)}, v13 offset:{L_MM}")
        a(f"ds_read_b128 {vr(M0+4)}, v13 offset:{L_MM + 16}")
        a(f"ds_read_b128 {vr(L0)}, v13 offset:{L_LL}")
        a(f"ds_read_b128 {vr(L0+4)}, v13 offset:{L_LL + 16}")
        for w in range(8):
            a(f"ds_read_b128 {vr(D0 + 4*w)}, v12 offset:{L_PART + w*4*576}")
        a("v_mov_b32 v76, 0")
        a(f"ds_read_b32 v76, v76 offset:{L_FLAG + 4}")
        a(f"s_lshl_b32 s4, s{HKV}, 16")
        a(f"s_lshl_b32 s5, s{BB}, 11")
        a("s_add_u32 s4, s4, s5")
        a(f"s_lshl_b32 s5, s{SS}, 8")
        a("s_add_u32 s4, s4, s5")
        a(f"s_add_u32 s4, s4, {P2}")
        a("v_lshlrev_b32 v14, 14, v10")
        a("v_lshrrev_b32 v15, 4, v11")
        a("v_lshl_add_u32 v14, v15, 13, v14")
        a("v_and_b32 v15, 15, v11")
        a("v_lshl_add_u32 v14, v15, 4, v14")
        a("v_add_u32 v14, s4, v14")
        a(f"s_lshl_b32 s4, s{HKV}, 11")
        a(f"s_lshl_b32 s5, s{BB}, 7")
        a("s_add_u32 s4, s4, s5")
        a(f"s_lshl_b32 s5, s{SS}, 4")
        a("s_add_u32 s4, s4, s5")
        a(f"s_add_u32 s4, s4, {ML}")
        a("v_lshlrev_b32 v15, 9, v10")
        a("v_add_u32 v15, s4, v15")
        a("s_waitcnt lgkmcnt(9)")
        a(f"v_max3_f32 v64, v{M0}, v{M0+1}, v{M0+2}")
        a(f"v_max3_f32 v64, v64, v{M0+3}, v{M0+4}")
        a(f"v_max3_f32 v64, v64, v{M0+5}, v{M0+6}")
        a(f"v_max_f32 v64, v64, v{M0+7}")
        for w in range(8): a(f"v_sub_f32 v{M0+w}, v{M0+w}, v64")
        for w in range(8): a(f"v_exp_f32 v{M0+w}, v{M0+w}")
        a(f"v_mul_f32 v65, v{M0}, v{L0}")
        for w in range(1, 8): a(f"v_fmac_f32 v65, v{M0+w}, v{L0+w}")
        a(f"v_bfi_b32 v72, v8, s{T[0]}, v64")
        a(f"v_bfi_b32 v73, v8, s{T[1]}, v65")
        a(f"v_mov_b32 v74, s{T[2]}")
        a(f"v_mov_b32 v75, s{T[3]}")
        a("s_waitcnt lgkmcnt(0)")
        a(f"v_readfirstlane_b32 s{MODE}, v76")
        for e in range(4): a(f"v_mul_f32 v{68+e}, v{M0}, v{D0+e}")
        for w in range(1, 8):
            for e in range(4): a(f"v_fmac_f32 v{68+e}, v{M0+w}, v{D0+4*w+e}")
        for e in range(4): a(f"v_bfi_b32 v{68+e}, v8, s{T[e]}, v{68+e}")
        a("v_cmp_eq_u32 vcc, 0, v11")
        a(f"s_cmp_eq_u32 s{MODE}, 1")
        a("s_cbranch_scc1 L_pub_local")
        a(f"buffer_store_dwordx4 {vr(68)}, v14, s[{SWS}:{SWS+3}], 0 offen sc1")
        a("s_and_b64 exec, exec, vcc")
        a(f"buffer_store_dwordx4 {vr(72)}, v15, s[{SWS}:{SWS+3}], 0 offen sc1")
        a("s_branch L_pub_done")
        a("L_pub_local:")
        a(f"buffer_store_dwordx4 {vr(68)}, v14, s[{SWS}:{SWS+3}], 0 offen")
        a("s_and_b64 exec, exec, vcc")
        a(f"buffer_store_dwordx4 {vr(72)}, v15, s[{SWS}:{SWS+3}], 0 offen")
        a("L_pub_done:")
        a("s_mov_b64 exec, -1")
        self.stamp(6, 't')
        a("s_waitcnt vmcnt(2)")
        self.perm_consts()
        self.sel_masks()
        AT = 80
        for st in range(3):
            for aa in range(4):
                for j in range(2):
                    r0 = WB + 16*st + 2*(2*aa) + j; r1 = WB + 16*st + 2*(2*aa+1) + j
                    a(f"v_perm_b32 v{AT + 16*st + 4*(2*j) + aa}, v{r1}, v{r0}, s80")
                    a(f"v_perm_b32 v{AT + 16*st + 4*(2*j+1) + aa}, v{r1}, v{r0}, s81")
        self.stamp(1, 't')
        self.proj_ids()
        a("s_lshl_b32 s4, s7, 6")
        a(f"s_lshr_b32 s5, s{RR}, 3")
        a("s_lshl_b32 s5, s5, 15")
        a("s_add_u32 s4, s4, s5")
        a(f"s_lshl_b32 s5, s{WV}, 14")
        a("s_add_u32 s4, s4, s5")
        a(f"s_add_u32 s4, s4, {P3}")
        a("v_and_b32 v12, 3, v3")
        a("v_lshlrev_b32 v12, 17, v12")
        a("v_lshrrev_b32 v13, 2, v3")
        a("v_lshl_add_u32 v12, v13, 12, v12")
        a("v_lshl_add_u32 v12, v2, 4, v12")
        a("v_add_u32 v12, s4, v12")
        a("v_and_b32 v9, 3, v3")
        a("v_mul_u32_u24 v10, 144, v9")
        a("v_lshl_add_u32 v10, v2, 4, v10")
        a("v_mul_u32_u24 v11, 80, v9")
        a("v_lshl_add_u32 v11, v2, 4, v11")
        BF = 232
        a(f"ds_read_b128 {vr(BF+8)}, v11 offset:{L_HB}")
        a(f"s_cmp_eq_u32 s{WV}, 0")
        a("s_cbranch_scc0 L_bar2")
        self.proj_ids()
        a("s_lshl_b32 s6, s4, 9")
        a("s_lshl_b32 s4, s7, 13")
        a(f"s_add_u32 s4, s4, {P2}")
        a(f"s_add_u32 s6, s6, {ML}")
        a("v_lshlrev_b32 v9, 11, v2")
        a("v_lshl_add_u32 v9, v3, 4, v9")
        a("v_add_u32 v9, s4, v9")
        a("v_and_b32 v13, 7, v3")
        a("v_lshlrev_b32 v13, 4, v13")
        a("v_lshl_add_u32 v13, v2, 7, v13")
        a("v_add_u32 v13, s6, v13")
        a("v_mul_u32_u24 v14, 144, v2")
        a("v_lshl_add_u32 v14, v3, 3, v14")
        self.spin_begin()
        rt = self.lab("ofull")
        a(f"{rt}:")
        D0, M0 = 16, 48
        a(f"buffer_load_dwordx4 {vr(M0)}, v13, s[{SWS}:{SWS+3}], 0 offen sc1")
        for s in range(8):
            a(f"buffer_load_dwordx4 {vr(D0 + 4*s)}, v9, s[{SWS}:{SWS+3}], 0 offen offset:{s*256} sc1")
        a("s_waitcnt vmcnt(0)")
        self.untag_check(list(range(D0, D0 + 36)), 15)
        self.spin_check(rt, sleep=0)
        self.stamp(2, 't')
        a(f"v_max_f32_dpp v52, v{M0}, v{M0} row_ror:4 row_mask:0xf bank_mask:0xf")
        a(f"v_max_f32_dpp v52, v52, v52 row_ror:2 row_mask:0xf bank_mask:0xf")
        a(f"v_max_f32_dpp v52, v52, v52 row_ror:1 row_mask:0xf bank_mask:0xf")
        a(f"v_sub_f32 v53, v{M0}, v52")
        a("v_exp_f32 v53, v53")
        a(f"v_mul_f32 v54, v53, v{M0+1}")
        a("v_add_f32_dpp v54, v54, v54 row_ror:4 row_mask:0xf bank_mask:0xf")
        a("v_add_f32_dpp v54, v54, v54 row_ror:2 row_mask:0xf bank_mask:0xf")
        a("v_add_f32_dpp v54, v54, v54 row_ror:1 row_mask:0xf bank_mask:0xf")
        a("v_rcp_f32 v54, v54")
        a("v_mul_f32 v53, v53, v54")
        for e in range(4):
            a(f"v_mul_f32_dpp v{56+e}, v53, v{D0+e} row_newbcast:0 row_mask:0xf bank_mask:0xf")
        for s in range(1, 8):
            for e in range(4):
                a(f"v_fmac_f32_dpp v{56+e}, v53, v{D0+4*s+e} row_newbcast:{s} row_mask:0xf bank_mask:0xf")
        a("v_cvt_pk_bf16_f32 v56, v56, v57")
        a("v_cvt_pk_bf16_f32 v57, v58, v59")
        a(f"ds_write_b64 v14, v[56:57] offset:{L_OB}")
        a("L_bar2:")
        a("s_waitcnt lgkmcnt(0)")
        a("s_barrier")
        a(f"ds_read_b128 {vr(BF)}, v10 offset:{L_OB}")
        a(f"ds_read_b128 {vr(BF+4)}, v10 offset:{L_OB + 64}")
        self.stamp(3, 't')
        ACC = 32
        for dl in range(4):
            a(f"v_mfma_f32_16x16x32_bf16 {vr(ACC + 4*dl)}, {vr(AT + 32 + 4*dl)}, {vr(BF + 8)}, 0")
        a("s_waitcnt lgkmcnt(0)")
        for st in range(2):
            for dl in range(4):
                a(f"v_mfma_f32_16x16x32_bf16 {vr(ACC + 4*dl)}, {vr(AT + 16*st + 4*dl)}, {vr(BF + 4*st)}, {vr(ACC + 4*dl)}")
        OUT = 48
        self.select_tag(ACC, 4, OUT)
        a(f"buffer_store_dwordx4 {vr(OUT)}, v12, s[{SWS}:{SWS+3}], 0 offen sc1")
        self.stamp(4, 't')
        a(f"s_cmp_eq_u32 s{WV}, 1")
        a("s_cbranch_scc0 L_fin")
        a("s_cmp_lt_u32 s2, 128")
        a("s_cbranch_scc0 L_fin")
        a("s_lshl_b32 s4, s2, 12")
        a(f"s_add_u32 s4, s4, {P3}")
        a("v_lshrrev_b32 v9, 2, v1")
        a("v_lshlrev_b32 v9, 8, v9")
        a("v_and_b32 v10, 3, v1")
        a("v_lshl_add_u32 v9, v10, 4, v9")
        a("v_add_u32 v9, s4, v9")
        srd(a, SOUT, sOUT_, 4096)
        a("s_lshr_b32 s5, s2, 5")
        a("s_lshl_b32 s5, s5, 9")
        a("s_bfe_u32 s6, s2, 0x20003")
        a("s_lshl_b32 s6, s6, 7")
        a("s_add_u32 s5, s5, s6")
        a("s_and_b32 s6, s2, 3")
        a("s_lshl_b32 s6, s6, 2")
        a("s_add_u32 s5, s5, s6")
        a("s_bfe_u32 s6, s2, 0x10002")
        a("s_lshl_b32 s6, s6, 6")
        a("s_add_u32 s5, s5, s6")
        a("v_lshl_add_u32 v11, v10, 4, v2")
        a("v_add_u32 v11, s5, v11")
        a("v_lshlrev_b32 v11, 1, v11")
        a(f"buffer_load_ushort v12, v11, s[{SX}:{SX+3}], 0 offen")
        sets = [16, 64, 96]
        def issue(F0):
            for t in range(4):
                a(f"buffer_load_dwordx4 {vr(F0 + 4*t)}, v9, s[{SWS}:{SWS+3}], 0 offen offset:{t*64} sc1")
        self.spin_begin()
        for F0 in sets: issue(F0)
        rt = self.lab("ffull"); done = [self.lab("fd") for _ in sets]; fin = self.lab("ffin")
        a(f"{rt}:")
        for k, F0 in enumerate(sets):
            a("s_waitcnt vmcnt(8)")
            self.untag_check(list(range(F0, F0 + 16)), 13)
            a(f"s_cbranch_vccz {done[k]}")
            issue(F0)
        a("s_add_u32 s83, s83, 1")
        a(f"s_cmp_lt_u32 s83, {self.spin}")
        a(f"s_cbranch_scc1 {rt}")
        a(f"s_branch {done[0]}")
        PR = 128
        for k in (2, 1, 0):
            a(f"{done[k]}:")
            S = sets[k]
            for e in range(4):
                a(f"v_add_f32 v{PR+e}, v{S+e}, v{S+4+e}")
                a(f"v_add_f32 v{PR+4+e}, v{S+8+e}, v{S+12+e}")
            if k != 0: a(f"s_branch {fin}")
        a(f"{fin}:")
        self.stamp(7, 't')
        F0 = PR
        for e in range(4): a(f"v_add_f32 v{F0+e}, v{F0+e}, v{F0+4+e}")
        for e in range(4): a(f"v_add_f32_dpp v{F0+e}, v{F0+e}, v{F0+e} row_ror:8 row_mask:0xf bank_mask:0xf")
        for e in range(4): a(f"v_add_f32_dpp v{F0+e}, v{F0+e}, v{F0+e} row_ror:4 row_mask:0xf bank_mask:0xf")
        a(f"v_permlane16_swap_b32 v{F0}, v{F0+1}")
        a(f"v_permlane16_swap_b32 v{F0+2}, v{F0+3}")
        a(f"v_add_f32 v{F0}, v{F0}, v{F0+1}")
        a(f"v_add_f32 v{F0+2}, v{F0+2}, v{F0+3}")
        a(f"v_permlane32_swap_b32 v{F0}, v{F0+2}")
        a(f"v_add_f32 v{F0}, v{F0}, v{F0+2}")
        a("v_lshlrev_b32 v12, 16, v12")
        a(f"v_add_f32 v{F0}, v{F0}, v12")
        a(f"v_cvt_pk_bf16_f32 v{F0}, v{F0}, v{F0}")
        a("s_mov_b32 exec_lo, 0x000f000f"); a("s_mov_b32 exec_hi, 0x000f000f")
        a(f"buffer_store_short v{F0}, v11, s[{SOUT}:{SOUT+3}], 0 offen")
        a("s_mov_b64 exec, -1")
        a("s_cmp_eq_u32 s2, 0")
        a("s_cbranch_scc0 L_fin")
        a(f"v_mov_b32 v20, s{TLO}")
        a(f"v_mov_b32 v21, s{THI}")
        a("v_mov_b32 v22, 0")
        a("s_mov_b64 exec, 1")
        a(f"buffer_store_dwordx2 v[20:21], v22, s[{SWS}:{SWS+3}], 0 offen")
        a("s_mov_b64 exec, -1")

    def emit_stamps(self):
        if not self.stamps: return
        a = self.a
        a("s_mov_b64 exec, -1")
        a("s_memrealtime s[84:85]")
        a("s_waitcnt lgkmcnt(0)")
        a("v_mov_b32 v6, s84")
        a(f"ds_write_b32 v7, v6 offset:{L_STAMP + 4*4}") if False else None
        a(f"ds_write_b32 v7, v6 offset:{L_STAMP + 4*13}") if False else None
        a("v_and_b32 v1, 15, v0")
        a("v_lshl_add_u32 v2, v1, 2, v7")
        a(f"ds_read_b32 v3, v2 offset:{L_STAMP}")
        a("s_waitcnt lgkmcnt(0)")
        a(f"v_cmp_eq_u32 vcc, {11 if not self.pro else 15}, v1")
        a("v_cndmask_b32 v3, v3, v6, vcc")
        a("s_lshl_b32 s4, s2, 9")
        a(f"s_add_u32 s4, s4, {STAMP}")
        a(f"s_add_u32 s6, s{sWS_}, s4")
        a(f"s_addc_u32 s7, s{sWS_+1}, 0")
        a("s_mov_b64 exec, 0xffff")
        a("global_store_dword v2, v3, s[6:7]")

if __name__ == "__main__":
    import argparse
    ap = argparse.ArgumentParser()
    ap.add_argument("out"); ap.add_argument("--stamps", action="store_true"); ap.add_argument("--nomimic", action="store_true")
    ap.add_argument("--pro", action="store_true"); ap.add_argument("--exp", default=""); ap.add_argument("--win", type=int, default=4)
    ap.add_argument("--nolocal", action="store_true")
    x = ap.parse_args()
    g = Gen(stamps=x.stamps, mimic=not x.nomimic, pro=x.pro, exp=x.exp, win=x.win, local=not x.nolocal)
    s = g.build()
    open(x.out, "w").write(s)
    print("lines", s.count("\n"), "nops", g.a.nnops, "lds", LDS_BYTES)
```
